```python
import torch

def _softmax(x, axis=-1):
    return torch.softmax(x, dim=axis)
def _gelu(x):
    return torch.nn.functional.gelu(x, approximate="tanh")
def _silu(x):
    return torch.nn.functional.silu(x)
def _sigmoid(x):
    return torch.sigmoid(x)
def _layernorm(x, axis=-1, eps=1e-5):
    m = x.mean(dim=axis, keepdim=True)
    v = x.var(dim=axis, keepdim=True, unbiased=False)
    return (x - m) / torch.sqrt(v + eps)
def _scatter_add(tgt, idx, src, axis=0):
    return tgt.clone().index_add_(axis, idx, src)
def _segment_sum(src, seg, n):
    out = torch.zeros((n,) + src.shape[1:], dtype=src.dtype)
    return out.index_add_(0, seg, src)
def _pad(x, pw):
    flat = tuple(v for pair in reversed(pw) for v in pair)
    return torch.nn.functional.pad(x, flat)

kernel_name = 'standalone__mha_softmax__near_ridge'

def setup_inputs():

    _w = (lambda a: (lambda t: t.to(torch.bfloat16) if t.is_floating_point() else t)(torch.as_tensor(a)))
    B, H, Sq, Sk, D = 8, 16, 512, 1024, 256
    return {
        "q": _w((lambda *s: torch.randn(*s, dtype=torch.bfloat16) * 0.8)(B, H, Sq, D)),
        "k": _w((lambda *s: torch.randn(*s, dtype=torch.bfloat16) * 0.8)(B, H, Sk, D)),
        "v": _w((lambda *s: torch.randn(*s, dtype=torch.bfloat16) * 0.05)(B, H, Sk, D)),
    }

def reference(q, k, v):
    scale = q.shape[-1] ** -0.5
    scores = torch.einsum("bhqd,bhkd->bhqk", q, k) * scale
    p = _softmax(scores, axis=-1)
    return torch.einsum("bhqk,bhkd->bhqd", p, v)
```

```python
import sys, math

NAME = "standalone__mha_softmax__near_ridge"

class I:
    __slots__ = ("text", "kind", "rd", "wr", "cost", "c_rd")
    def __init__(self, text, kind, rd=(), wr=(), cost=4, c_rd=()):
        self.text, self.kind = text, kind
        self.rd, self.wr, self.cost, self.c_rd = set(rd), set(wr), cost, set(c_rd)

def V(n, cnt=1): return [("v", n + i) for i in range(cnt)]
def A(n, cnt=1): return [("a", n + i) for i in range(cnt)]
def vr(n, cnt): return f"v[{n}:{n+cnt-1}]"
def ar(n, cnt): return f"a[{n}:{n+cnt-1}]"

vKADDR = 0
vVADDR = 8
vDK = 12
vDV = 16
vNEGM = 18
vTHR = 20
vL = 22
vMX = 26
vT = 30
vVF = 32
vKF = 48
vS = 64
vQ = 128

sQ, sK, sV, sO = 12, 16, 20, 24
sC = 28
sW = 29
sKOFF = 30
sVOFF = 31
sCNT = 32
sRET = 34
sTMP = 36
sINVC = 38
sTHC = 39
s16K = 40
sWID = 41

C_SCALE = math.log2(math.e) / 16.0
THRESH = 8.0

import struct
def f32hex(x): return "0x%08x" % struct.unpack("<I", struct.pack("<f", x))[0]

KBASE, VBASE, STAGE = 0, 65536, 16384

class Gen:
    def __init__(self):
        self.out = []
        self.lds_q = []
        self.vm_q = []
    def e(self, ins): self.out.append(ins); return ins
    def raw(self, text, kind="salu"): return self.e(I(text, kind))
    def label(self, name): return self.e(I(name + ":", "label", cost=0))
    def nop(self, n): return self.e(I(f"s_nop {n}", "nop", cost=4 * (n + 1)))
    def ds(self, ins, tag):
        self.lds_q.append(tag); return self.e(ins)
    def wait_lds(self, tag):
        idx = max(i for i, t in enumerate(self.lds_q) if t == tag) if tag in self.lds_q else -1
        if idx < 0: return
        n = len(self.lds_q) - 1 - idx
        assert n <= 15
        self.lds_q = self.lds_q[idx + 1:]
        self.e(I(f"s_waitcnt lgkmcnt({n})", "wait"))
    def vm(self, ins, tag):
        self.vm_q.append(tag); return self.e(ins)
    def wait_vm(self, tags):
        idxs = [i for i, t in enumerate(self.vm_q) if t in tags]
        if not idxs: return
        idx = max(idxs)
        n = len(self.vm_q) - 1 - idx
        assert n <= 63
        self.vm_q = self.vm_q[idx + 1:]
        self.e(I(f"s_waitcnt vmcnt({n})", "wait"))

    def kread(self, tile, s):
        st = tile % 4
        dst = vKF + 4 * (s % 4)
        off = KBASE + st * STAGE + (s // 8) * 256
        return I(f"ds_read_b128 {vr(dst,4)}, v{vKADDR + s % 8} offset:{off}", "ds",
                 rd=V(vKADDR + s % 8), wr=V(dst, 4))
    def vread(self, tile, f, jj):
        st = tile % 4
        kk, db = f // 8, f % 8
        dst = vVF + 4 * (f % 4) + 2 * jj
        off = st * STAGE + kk * 8192 + jj * 4096 + (db // 4) * 256
        return I(f"ds_read_b64_tr_b16 {vr(dst,2)}, v{vVADDR + db % 4} offset:{off}", "ds",
                 rd=V(vVADDR + db % 4), wr=V(dst, 2))
    def mfma_qk(self, sbuf, s, qb):
        d = vS + 32 * sbuf + 16 * qb
        a = vKF + 4 * (s % 4)
        b = vQ + (qb * 16 + s) * 4
        if s == 0:
            return I(f"v_mfma_f32_32x32x16_bf16 {vr(d,16)}, {vr(a,4)}, {vr(b,4)}, 0", "mfma",
                     rd=V(a, 4) + V(b, 4), wr=V(d, 16), cost=8)
        return I(f"v_mfma_f32_32x32x16_bf16 {vr(d,16)}, {vr(a,4)}, {vr(b,4)}, {vr(d,16)}", "mfma",
                 rd=V(a, 4) + V(b, 4), wr=V(d, 16), cost=8, c_rd=V(d, 16))
    def mfma_pv(self, sbuf, f, qb):
        kk, db = f // 8, f % 8
        d = qb * 128 + db * 16
        a = vVF + 4 * (f % 4)
        b = vS + 32 * sbuf + 16 * qb + 4 * kk
        return I(f"v_mfma_f32_32x32x16_bf16 {ar(d,16)}, {vr(a,4)}, {vr(b,4)}, {ar(d,16)}", "mfma",
                 rd=V(a, 4) + V(b, 4), wr=A(d, 16), cost=8, c_rd=A(d, 16))
    def softmax_stream(self, sbuf, kk):
        units = []
        for qb in range(2):
            for t in range(4 * kk, 4 * kk + 4):
                base = vS + 32 * sbuf + 16 * qb
                a, b, d = base + 2 * t, base + 2 * t + 1, base + t
                nm = vNEGM + qb
                l0, l1 = vL + 2 * qb, vL + 2 * qb + 1
                units.append([
                    I(f"v_fma_f32 v{a}, v{a}, s{sC}, v{nm}", "valu", rd=V(a) + V(nm), wr=V(a)),
                    I(f"v_fma_f32 v{b}, v{b}, s{sC}, v{nm}", "valu", rd=V(b) + V(nm), wr=V(b)),
                    I(f"v_exp_f32 v{a}, v{a}", "trans", rd=V(a), wr=V(a), cost=8),
                    I(f"v_exp_f32 v{b}, v{b}", "trans", rd=V(b), wr=V(b), cost=8),
                    I(f"v_add_f32 v{l0}, v{l0}, v{a}", "valu", rd=V(a) + V(l0), wr=V(l0)),
                    I(f"v_add_f32 v{l1}, v{l1}, v{b}", "valu", rd=V(b) + V(l1), wr=V(l1)),
                    I(f"v_cvt_pk_bf16_f32 v{d}, v{a}, v{b}", "valu", rd=V(a) + V(b), wr=V(d)),
                ])
        s = []
        s += units[0][0:2]
        for u in range(len(units)):
            s += units[u][2:4]
            if u + 1 < len(units): s += units[u + 1][0:2]
            else: s.append(I("s_nop 0", "nop"))
            s += units[u][4:7]
        return s
    def max_stream(self, sbuf):
        s = []
        for qb in range(2):
            base = vS + 32 * sbuf + 16 * qb
            m0, m1 = vMX + 2 * qb, vMX + 2 * qb + 1
            s.append(I(f"v_max3_f32 v{m0}, v{base}, v{base+1}, v{base+2}", "valu", rd=V(base, 3), wr=V(m0)))
            s.append(I(f"v_max3_f32 v{m1}, v{base+3}, v{base+4}, v{base+5}", "valu", rd=V(base + 3, 3), wr=V(m1)))
            k = 6
            tog = 0
            while k + 1 < 16:
                m = (m0, m1)[tog]
                s.append(I(f"v_max3_f32 v{m}, v{m}, v{base+k}, v{base+k+1}", "valu", rd=V(m) + V(base + k, 2), wr=V(m)))
                k += 2; tog ^= 1
            assert k == 16
            s.append(I(f"v_max_f32 v{m0}, v{m0}, v{m1}", "valu", rd=V(m0) + V(m1), wr=V(m0)))
        return s
    def dma_group(self, which, stage):
        base = (KBASE if which == "K" else VBASE) + stage * STAGE
        srd = sK if which == "K" else sV
        so = sKOFF if which == "K" else sVOFF
        r = []
        for i in range(4):
            vo = vDK + i if which == "K" else vDV + (i & 1)
            lst = []
            if i == 0:
                lst.append(I(f"s_add_u32 m0, s{sW}, {base}", "salu"))
                lst.append(I("s_nop 0", "nop"))
            lst.append(I(f"buffer_load_dwordx4 v{vo}, s[{srd}:{srd+3}], s{so} offen offset:{1024*i} lds", "vmem", rd=V(vo), cost=16))
            r.append(lst)
        return r

g = Gen()

def prologue():
    e, raw = g.e, g.raw
    raw("s_cmp_ge_u32 s2, 256")
    raw("s_cbranch_scc1 L_end", "branch")
    raw("s_load_dwordx4 s[4:7], s[0:1], 0")
    raw("s_load_dwordx4 s[8:11], s[0:1], 16")
    raw("v_lshrrev_b32 v32, 6, v0", "valu")
    raw("v_and_b32 v33, 63, v0", "valu")
    raw(f"v_readfirstlane_b32 s{sWID}, v32", "valu")
    raw("v_and_b32 v34, 31, v33", "valu")
    raw("v_lshrrev_b32 v35, 5, v33", "valu")
    raw("v_and_b32 v36, 15, v33", "valu")
    raw(f"s_lshl_b32 s{sW}, s{sWID}, 12")
    raw("s_and_b32 s3, s2, 7")
    raw("s_lshr_b32 s42, s2, 3")
    raw("s_lshl_b32 s3, s3, 4")
    raw("s_lshr_b32 s43, s42, 1")
    raw("s_add_u32 s3, s3, s43")
    raw("s_and_b32 s42, s42, 1")
    raw("s_lshl_b32 s43, s3, 19")
    raw("s_lshl_b32 s44, s3, 18")
    raw("s_lshl_b32 s42, s42, 17")
    raw("s_add_u32 s44, s44, s42")
    raw(f"s_mov_b32 s{sC}, {f32hex(C_SCALE)}")
    raw(f"s_mov_b32 s{sINVC}, {f32hex(1.0 / C_SCALE)}")
    raw(f"s_mov_b32 s{sTHC}, {f32hex(THRESH / C_SCALE)}")
    raw(f"s_mov_b32 s{s16K}, 16384")
    raw("v_xor_b32 v37, v35, v36", "valu")
    raw("v_lshlrev_b32 v37, 4, v37", "valu")
    raw(f"v_lshl_add_u32 v{vKADDR}, v34, 9, v37", "valu")
    for s8 in range(1, 8):
        raw(f"v_xor_b32 v{vKADDR+s8}, {s8 << 5}, v{vKADDR}", "valu")
    raw("v_lshrrev_b32 v37, 2, v36", "valu")
    raw("v_and_b32 v38, 3, v33", "valu")
    raw("v_bfe_u32 v39, v33, 4, 1", "valu")
    raw("v_lshl_add_u32 v40, v35, 2, v37", "valu")
    raw("v_lshlrev_b32 v40, 9, v40", "valu")
    raw("v_lshl_add_u32 v40, v37, 6, v40", "valu")
    raw("v_lshl_add_u32 v40, v39, 5, v40", "valu")
    raw("v_lshl_add_u32 v40, v38, 3, v40", "valu")
    raw(f"v_add_u32 v{vVADDR}, {VBASE}, v40", "valu")
    for d in range(1, 4):
        raw(f"v_xor_b32 v{vVADDR+d}, {d << 6}, v{vVADDR}", "valu")
    raw("v_and_b32 v37, 1, v32", "valu")
    raw("v_lshl_add_u32 v37, v37, 3, v35", "valu")
    raw("v_xor_b32 v37, v37, v34", "valu")
    raw("v_lshlrev_b32 v37, 4, v37", "valu")
    raw("v_lshl_add_u32 v37, v35, 9, v37", "valu")
    raw(f"v_lshl_add_u32 v{vDK}, v32, 12, v37", "valu")
    for i in range(1, 4):
        raw(f"v_xor_b32 v{vDK+i}, {i << 5}, v{vDK}", "valu")
    raw("v_lshlrev_b32 v37, 2, v35", "valu")
    raw("v_xor_b32 v37, v37, v34", "valu")
    raw("v_lshlrev_b32 v37, 4, v37", "valu")
    raw("v_lshl_add_u32 v37, v35, 9, v37", "valu")
    raw(f"v_lshl_add_u32 v{vDV}, v32, 12, v37", "valu")
    raw(f"v_xor_b32 v{vDV+1}, 128, v{vDV}", "valu")
    raw("v_lshl_add_u32 v41, v32, 6, v34", "valu")
    raw("v_lshlrev_b32 v41, 9, v41", "valu")
    raw("v_lshl_add_u32 v41, v35, 4, v41", "valu")
    raw("s_waitcnt lgkmcnt(0)", "wait")
    def srd(dst, plo, off, nbytes):
        raw(f"s_add_u32 s{dst}, s{plo}, s{off}")
        raw(f"s_addc_u32 s{dst+1}, s{plo+1}, 0")
        raw(f"s_and_b32 s{dst+1}, s{dst+1}, 0xffff")
        raw(f"s_mov_b32 s{dst+2}, {nbytes}")
        raw(f"s_mov_b32 s{dst+3}, 0x00020000")
    srd(sK, 6, 43, 524288)
    srd(sQ, 4, 44, 131072)
    srd(sV, 8, 43, 524288)
    srd(sO, 10, 44, 131072)
    def dma_now(which, tile):
        so = sKOFF if which == "K" else sVOFF
        raw(f"s_mov_b32 s{so}, {tile * 16384}")
        for lst in g.dma_group(which, tile % 4):
            for ins in lst:
                if ins.kind == "vmem": g.vm(ins, (which, tile))
                else: g.e(ins)
    dma_now("K", 0)
    for qb in range(2):
        for s in range(16):
            d = vQ + (qb * 16 + s) * 4
            so = "0" if qb == 0 else f"s{s16K}"
            g.vm(I(f"buffer_load_dwordx4 {vr(d,4)}, v41, s[{sQ}:{sQ+3}], {so} offen offset:{s*32}", "vmem",
                   rd=V(41), wr=V(d, 4)), "Q")
    dma_now("K", 1)
    dma_now("V", 0)
    dma_now("K", 2)
    dma_now("V", 1)
    dma_now("K", 3)
    raw(f"s_mov_b32 s{sKOFF}, {4 * 16384}")
    raw(f"s_mov_b32 s{sVOFF}, {2 * 16384}")
    for i in range(256):
        e(I(f"v_accvgpr_write_b32 a{i}, 0", "valu", wr=A(i)))
    for i in range(4):
        e(I(f"v_mov_b32 v{vL+i}, 0", "valu", wr=V(vL + i)))
    g.wait_vm({("K", 0), "Q"})
    raw("s_barrier", "barrier")
    for s in range(4): g.ds(g.kread(0, s), ("K", 0, s))
    for s in range(16):
        g.wait_lds(("K", 0, s))
        e(g.mfma_qk(0, s, 0))
        e(g.mfma_qk(0, s, 1))
        if s + 4 < 16: g.ds(g.kread(0, s + 4), ("K", 0, s + 4))
    g.wait_vm({("K", 1), ("V", 0)})
    raw("s_barrier", "barrier")
    for s in range(4): g.ds(g.kread(1, s), ("K", 1, s))
    for which, tile in (("V", 2), ("K", 4)):
        for lst in g.dma_group(which, tile % 4):
            for ins in lst:
                if ins.kind == "vmem": g.vm(ins, (which, tile))
                else: g.e(ins)
    raw(f"s_add_u32 s{sKOFF}, s{sKOFF}, 16384")
    raw(f"s_add_u32 s{sVOFF}, s{sVOFF}, 16384")
    g.nop(3)
    for ins in g.max_stream(0): e(ins)
    for qb in range(2):
        mx = vMX + 2 * qb
        e(I(f"v_mov_b32 v{mx+1}, v{mx}", "valu", rd=V(mx), wr=V(mx + 1)))
    g.nop(1)
    for qb in range(2):
        mx = vMX + 2 * qb
        e(I(f"v_permlane32_swap_b32 v{mx}, v{mx+1}", "perm", rd=V(mx, 2), wr=V(mx, 2)))
    g.nop(1)
    for qb in range(2):
        mx = vMX + 2 * qb
        e(I(f"v_max_f32 v{mx}, v{mx}, v{mx+1}", "valu", rd=V(mx, 2), wr=V(mx)))
        e(I(f"v_mul_f32 v{mx}, s{sC}, v{mx}", "valu", rd=V(mx), wr=V(mx)))
        e(I(f"v_sub_f32 v{vNEGM+qb}, 0, v{mx}", "valu", rd=V(mx), wr=V(vNEGM + qb)))
        e(I(f"v_mov_b32 v{mx+1}, s{sTHC}", "valu", wr=V(mx + 1)))
        e(I(f"v_fma_f32 v{vTHR+qb}, v{mx}, s{sINVC}, v{mx+1}", "valu", rd=V(mx, 2), wr=V(vTHR + qb)))

def spread(stream, g0, g1, slots):
    tot = sum(i.cost for i in stream)
    n = g1 - g0 + 1
    acc = 0
    for ins in stream:
        gi = g0 + min(n - 1, int((acc + ins.cost / 2) * n / tot))
        slots[gi].append(ins)
        acc += ins.cost

def iteration(j, last=False, dma=True, ret_id=0):
    cur, nxt = j % 2, (j + 1) % 2
    slots = [[] for _ in range(64)]
    pre = [[] for _ in range(64)]
    sm0 = g.softmax_stream(cur, 0)
    sm1 = g.softmax_stream(cur, 1)
    if not last:
        spread(sm0 + sm1, 0, 45, slots)
        mx = g.max_stream(nxt)
        chk = [
            I(f"v_cmp_gt_f32 vcc, v{vMX}, v{vTHR}", "valu", rd=V(vMX) + V(vTHR)),
            I(f"v_cmp_gt_f32 s[{sTMP}:{sTMP+1}], v{vMX+2}, v{vTHR+1}", "valu", rd=V(vMX + 2) + V(vTHR + 1)),
        ]
        spread(mx + chk, 48, 61, slots)
    mf = []
    if not last:
        for s in range(16):
            mf.append(("qk", s, 0)); mf.append(("qk", s, 1))
    for f in range(16):
        mf.append(("pv", f, 0)); mf.append(("pv", f, 1))
    if last:
        for f in range(4):
            for jj in range(2): g.ds(g.vread(j, f, jj), ("V", j, f))
        for ins in sm0: g.e(ins)
        g.nop(1)
        sl = [[] for _ in range(32)]
        spread(sm1, 0, 13, sl)
        for gi, (_, f, qb) in enumerate(mf):
            if qb == 0: g.wait_lds(("V", j, f))
            g.e(g.mfma_pv(cur, f, qb))
            for ins in sl[gi]: g.e(ins)
            if qb == 1 and f + 4 < 16:
                for jj in range(2): g.ds(g.vread(j, f + 4, jj), ("V", j, f + 4))
        return
    dmas = []
    if dma:
        for which, tile in (("V", j + 3), ("K", j + 5)):
            for lst in g.dma_group(which, tile % 4):
                dmas.append((lst, (which, tile)))
    dma_gap = {48 + 2 * i: d for i, d in enumerate(dmas)}
    for gi, (kind, x, qb) in enumerate(mf):
        if kind == "qk":
            if qb == 0: g.wait_lds(("K", j + 1, x))
            g.e(g.mfma_qk(nxt, x, qb))
        else:
            if qb == 0: g.wait_lds(("V", j, x))
            g.e(g.mfma_pv(cur, x, qb))
        if qb == 1:
            if kind == "qk":
                if x + 4 < 16: g.ds(g.kread(j + 1, x + 4), ("K", j + 1, x + 4))
                else:
                    f = x + 4 - 16
                    for jj in range(2): g.ds(g.vread(j, f, jj), ("V", j, f))
            else:
                if x + 4 < 16:
                    for jj in range(2): g.ds(g.vread(j, x + 4, jj), ("V", j, x + 4))
                else:
                    s = x + 4 - 16
                    g.ds(g.kread(j + 2, s), ("K", j + 2, s))
        for ins in slots[gi]: g.e(ins)
        if gi == 30:
            g.wait_vm({("K", j + 2), ("V", j + 1)})
            g.raw("s_barrier", "barrier")
        if gi in dma_gap:
            lst, tag = dma_gap[gi]
            for ins in lst:
                if ins.kind == "vmem": g.vm(ins, tag)
                else: g.e(ins)
    if dma:
        g.raw(f"s_add_u32 s{sKOFF}, s{sKOFF}, 16384")
        g.raw(f"s_add_u32 s{sVOFF}, s{sVOFF}, 16384")
    g.raw(f"s_or_b64 s[{sTMP}:{sTMP+1}], s[{sTMP}:{sTMP+1}], vcc")
    g.raw(f"s_cbranch_scc0 L_skip_{ret_id}", "branch")
    g.raw(f"s_getpc_b64 s[{sRET}:{sRET+1}]")
    g.raw(f"s_add_u32 s{sRET}, s{sRET}, L_skip_{ret_id} - . - 0 + 0")
    g.raw(f"s_addc_u32 s{sRET+1}, s{sRET+1}, 0")
    g.raw("s_branch L_rescale", "branch")
    g.label(f"L_skip_{ret_id}")

def rescale_sub():
    e = g.e
    g.label("L_rescale")
    g.nop(15)
    for qb in range(2):
        mx = vMX + 2 * qb
        e(I(f"v_mov_b32 v{mx+1}, v{mx}", "valu", rd=V(mx), wr=V(mx + 1)))
    g.nop(1)
    for qb in range(2):
        mx = vMX + 2 * qb
        e(I(f"v_permlane32_swap_b32 v{mx}, v{mx+1}", "perm", rd=V(mx, 2), wr=V(mx, 2)))
    g.nop(1)
    for qb in range(2):
        mx = vMX + 2 * qb
        nm = vNEGM + qb
        e(I(f"v_max_f32 v{mx}, v{mx}, v{mx+1}", "valu", rd=V(mx, 2), wr=V(mx)))
        e(I(f"v_mul_f32 v{mx}, s{sC}, v{mx}", "valu", rd=V(mx), wr=V(mx)))
        e(I(f"v_max_f32 v{mx}, v{mx}, -v{nm}", "valu", rd=V(mx) + V(nm), wr=V(mx)))
        e(I(f"v_sub_f32 v{vT+qb}, -v{nm}, v{mx}", "valu", rd=V(mx) + V(nm), wr=V(vT + qb)))
        e(I(f"v_exp_f32 v{vT+qb}, v{vT+qb}", "trans", rd=V(vT + qb), wr=V(vT + qb)))
        e(I(f"v_sub_f32 v{nm}, 0, v{mx}", "valu", rd=V(mx), wr=V(nm)))
        e(I(f"v_mov_b32 v{mx+1}, s{sTHC}", "valu", wr=V(mx + 1)))
        e(I(f"v_fma_f32 v{vTHR+qb}, v{mx}, s{sINVC}, v{mx+1}", "valu", rd=V(mx, 2), wr=V(vTHR + qb)))
        for k in range(2):
            l = vL + 2 * qb + k
            e(I(f"v_mul_f32 v{l}, v{l}, v{vT+qb}", "valu", rd=V(l) + V(vT + qb), wr=V(l)))
    for qb in range(2):
        for r in range(0, 128, 4):
            for k in range(4):
                e(I(f"v_accvgpr_read_b32 v{vMX+k}, a{qb*128+r+k}", "valu", rd=A(qb * 128 + r + k), wr=V(vMX + k)))
            for k in range(4):
                e(I(f"v_mul_f32 v{vMX+k}, v{vMX+k}, v{vT+qb}", "valu", rd=V(vMX + k) + V(vT + qb), wr=V(vMX + k)))
            for k in range(4):
                e(I(f"v_accvgpr_write_b32 a{qb*128+r+k}, v{vMX+k}", "valu", rd=V(vMX + k), wr=A(qb * 128 + r + k)))
    g.nop(1)
    g.raw(f"s_setpc_b64 s[{sRET}:{sRET+1}]", "branch")

def epilogue():
    e, raw = g.e, g.raw
    for qb in range(2):
        l = vL + 2 * qb
        e(I(f"v_add_f32 v{l}, v{l}, v{l+1}", "valu", rd=V(l, 2), wr=V(l)))
        e(I(f"v_mov_b32 v{l+1}, v{l}", "valu", rd=V(l), wr=V(l + 1)))
    g.nop(1)
    for qb in range(2):
        l = vL + 2 * qb
        e(I(f"v_permlane32_swap_b32 v{l}, v{l+1}", "perm", rd=V(l, 2), wr=V(l, 2)))
    g.nop(1)
    for qb in range(2):
        l = vL + 2 * qb
        e(I(f"v_add_f32 v{l}, v{l}, v{l+1}", "valu", rd=V(l, 2), wr=V(l)))
        e(I(f"v_rcp_f32 v{l}, v{l}", "trans", rd=V(l), wr=V(l)))
    raw(f"v_mbcnt_lo_u32_b32 v{vT}, -1, 0", "valu")
    raw(f"v_mbcnt_hi_u32_b32 v{vT}, -1, v{vT}", "valu")
    raw(f"v_and_b32 v{vT+1}, 31, v{vT}", "valu")
    raw(f"v_lshrrev_b32 v{vT}, 5, v{vT}", "valu")
    raw(f"v_lshlrev_b32 v{vT}, 4, v{vT}", "valu")
    raw(f"v_lshl_add_u32 v{vT}, v{vT+1}, 9, v{vT}", "valu")
    raw(f"s_lshl_b32 s42, s{sWID}, 15")
    raw(f"s_add_u32 s43, s42, 16384")
    g.nop(7)
    u = 0
    for qb in range(2):
        l = vL + 2 * qb
        for db in range(8):
            for pr in range(2):
                t = vS + 8 * (u % 8); u += 1
                a0 = qb * 128 + db * 16 + pr * 8
                for k in range(8):
                    e(I(f"v_accvgpr_read_b32 v{t+k}, a{a0+k}", "valu", rd=A(a0 + k), wr=V(t + k)))
                for k in range(8):
                    e(I(f"v_mul_f32 v{t+k}, v{t+k}, v{l}", "valu", rd=V(t + k) + V(l), wr=V(t + k)))
                for k in range(4):
                    e(I(f"v_cvt_pk_bf16_f32 v{t+k}, v{t+2*k}, v{t+2*k+1}", "valu", rd=V(t + 2 * k, 2), wr=V(t + k)))
                g.nop(1)
                e(I(f"v_permlane32_swap_b32 v{t}, v{t+2}", "perm", rd=V(t) + V(t + 2), wr=V(t) + V(t + 2)))
                e(I(f"v_permlane32_swap_b32 v{t+1}, v{t+3}", "perm", rd=V(t + 1) + V(t + 3), wr=V(t + 1) + V(t + 3)))
                so = 42 + qb
                e(I(f"buffer_store_dwordx4 {vr(t,4)}, v{vT}, s[{sO}:{sO+3}], s{so} offen offset:{64*db+32*pr}", "vmem",
                    rd=V(t, 4) + V(vT)))

def check_hazards(seq):
    bad = 0
    n = len(seq)
    for i, c in enumerate(seq):
        if c.kind in ("label",): continue
        ws = 0
        for k in range(i - 1, max(-1, i - 24), -1):
            p = seq[k]
            if p.kind == "label": continue
            need = 0
            if p.kind in ("valu", "trans", "perm") and c.kind == "mfma" and (p.wr & (c.rd | c.c_rd)): need = 2
            if p.kind == "mfma":
                if c.kind in ("valu", "trans", "perm", "ds", "vmem") and (p.wr & (c.rd | c.wr)): need = max(need, 12)
                if c.kind == "mfma" and (p.wr & c.rd): need = max(need, 12)
                if c.kind == "mfma" and (p.wr & c.c_rd) and p.wr != c.c_rd: need = max(need, 10)
                if c.kind in ("valu", "trans", "perm") and (p.c_rd & c.wr): need = max(need, 7)
            if p.kind == "trans" and c.kind in ("valu", "perm", "mfma") and (p.wr & c.rd): need = max(need, 1)
            if p.kind in ("valu", "trans") and c.kind == "perm" and (p.wr & c.rd): need = max(need, 2)
            if p.kind == "vmem" and "store" in p.text and c.kind in ("valu", "trans", "perm") and (p.rd & c.wr): need = max(need, 2)
            if ws < need:
                print(f"HAZARD: need {need} have {ws}:\n   {p.text}\n   {c.text}", file=sys.stderr)
                bad += 1
            ws += (int(p.text.split()[1]) + 1) if p.kind == "nop" else 1
    return bad

prologue()
g.raw(f"s_mov_b32 s{sCNT}, 7")
g.label("L_loop")
loop_start = len(g.out)
lds_state0, vm_state0 = list(g.lds_q), list(g.vm_q)
for u in range(4):
    iteration(u, ret_id=u)
g.raw(f"s_sub_u32 s{sCNT}, s{sCNT}, 1")
g.raw(f"s_cmp_lg_u32 s{sCNT}, 0")
g.raw("s_cbranch_scc1 L_loop", "branch")
loop_end = len(g.out)
def shift(q, d):
    r = []
    for t in q:
        if isinstance(t, tuple): r.append((t[0], t[1] + d) + tuple(t[2:]))
        else: r.append(t)
    return r
assert shift(lds_state0, 4) == g.lds_q, (lds_state0, g.lds_q)
assert shift(vm_state0, 4) == g.vm_q, (vm_state0, g.vm_q)
g.lds_q = shift(g.lds_q, 24); g.vm_q = shift(g.vm_q, 24)
for j in range(28, 32):
    iteration(j, last=(j == 31), dma=(j == 28), ret_id=j)
g.nop(15)
epilogue()
g.label("L_end")
g.raw("s_endpgm", "branch")
rescale_sub()

seq = g.out
nb = check_hazards(seq[:loop_end] + seq[loop_start:loop_end] + seq[loop_end:])
if nb: print(f"{nb} hazards", file=sys.stderr)

hdr = open("cdna_kernels/" + NAME + ".s.ref").read().split("; Override launch geometry")[0]
lines = [hdr.rstrip("\n"),
         "; Generated by gen.py",
         "; @launch grid=(256,1,1) block=(256,1,1) lds=131072",
         '.amdgcn_target "amdgcn-amd-amdhsa--gfx950"',
         ".text",
         f".globl {NAME}_kernel",
         ".p2align 8",
         f".type {NAME}_kernel,@function",
         f"{NAME}_kernel:"]
for ins in seq:
    t = ins.text
    if t.startswith(f"s_add_u32 s{sRET}, s{sRET}, L_skip_"):
        lab = t.split(",")[2].split()[0]
        lines.append(f"Lpc_{lab}:")
        t = f"s_add_u32 s{sRET}, s{sRET}, {lab} - Lpc_{lab}"
    lines.append(("" if ins.kind == "label" else "    ") + t)
lines += [
    '.section .rodata,"a"',
    ".p2align 6",
    f".amdhsa_kernel {NAME}_kernel",
    "  .amdhsa_next_free_vgpr 512",
    "  .amdhsa_next_free_sgpr 64",
    "  .amdhsa_accum_offset 256",
    "  .amdhsa_group_segment_fixed_size 0",
    "  .amdhsa_kernarg_size 48",
    "  .amdhsa_user_sgpr_count 2",
    "  .amdhsa_user_sgpr_kernarg_segment_ptr 1",
    "  .amdhsa_system_sgpr_workgroup_id_x 1",
    ".end_amdhsa_kernel",
]
outp = sys.argv[1] if len(sys.argv) > 1 else "cdna_kernels/" + NAME + ".s"
open(outp, "w").write("\n".join(lines) + "\n")
print("wrote", outp, len(seq), "instrs")
```

```python
import sys, math

NAME = "standalone__mha_softmax__near_ridge"
def opt(name, default=""):
    for a in sys.argv[1:]:
        if a.startswith("--" + name + "="): return a.split("=", 1)[1]
    return default
QPOL = opt("qpol"); KVPOL = opt("kvpol"); OPOL = opt("opol")
def pol(p): return (" " + p.replace("+", " ")) if p else ""

class I:
    __slots__ = ("text", "kind", "rd", "wr", "cost", "c_rd")
    def __init__(self, text, kind, rd=(), wr=(), cost=4, c_rd=()):
        self.text, self.kind = text, kind
        self.rd, self.wr, self.cost, self.c_rd = set(rd), set(wr), cost, set(c_rd)

def V(n, cnt=1): return [("v", n + i) for i in range(cnt)]
def A(n, cnt=1): return [("a", n + i) for i in range(cnt)]
def vr(n, cnt): return f"v[{n}:{n+cnt-1}]"
def ar(n, cnt): return f"a[{n}:{n+cnt-1}]"

vKADDR = 0
vVADDR = 8
vDK = 12
vDV = 16
vNEGM = 18
vTHR = 20
vL = 22
vMX = 26
vT = 30
vVF = 32
vKF = 48
vS = 64
vQ = 128

sQ, sK, sV, sO = 12, 16, 20, 24
sC = 28
sW = 29
sKOFF = 30
sVOFF = 31
sCNT = 32
sRET = 34
sTMP = 36
sINVC = 38
sTHC = 39
s16K = 40
sWID = 41

C_SCALE = math.log2(math.e) / 16.0
THRESH = 8.0

import struct
def f32hex(x): return "0x%08x" % struct.unpack("<I", struct.pack("<f", x))[0]

KBASE, VBASE, STAGE = 0, 65536, 16384

class Gen:
    def __init__(self):
        self.out = []
        self.lds_q = []
        self.vm_q = []
    def e(self, ins): self.out.append(ins); return ins
    def raw(self, text, kind="salu"): return self.e(I(text, kind))
    def label(self, name): return self.e(I(name + ":", "label", cost=0))
    def nop(self, n): return self.e(I(f"s_nop {n}", "nop", cost=4 * (n + 1)))
    def ds(self, ins, tag):
        self.lds_q.append(tag); return self.e(ins)
    def wait_lds(self, tag):
        idx = max(i for i, t in enumerate(self.lds_q) if t == tag) if tag in self.lds_q else -1
        if idx < 0: return
        n = len(self.lds_q) - 1 - idx
        assert n <= 15
        self.lds_q = self.lds_q[idx + 1:]
        self.e(I(f"s_waitcnt lgkmcnt({n})", "wait"))
    def vm(self, ins, tag):
        self.vm_q.append(tag); return self.e(ins)
    def wait_vm(self, tags):
        idxs = [i for i, t in enumerate(self.vm_q) if t in tags]
        if not idxs: return
        idx = max(idxs)
        n = len(self.vm_q) - 1 - idx
        assert n <= 63
        self.vm_q = self.vm_q[idx + 1:]
        self.e(I(f"s_waitcnt vmcnt({n})", "wait"))

    def kread(self, tile, s):
        st = tile % 4
        dst = vKF + 4 * (s % 4)
        off = KBASE + st * STAGE + (s // 8) * 256
        return I(f"ds_read_b128 {vr(dst,4)}, v{vKADDR + s % 8} offset:{off}", "ds",
                 rd=V(vKADDR + s % 8), wr=V(dst, 4))
    def vread(self, tile, f, jj):
        st = tile % 4
        kk, db = f // 8, f % 8
        dst = vVF + 4 * (f % 4) + 2 * jj
        off = st * STAGE + kk * 8192 + jj * 4096 + (db // 4) * 256
        return I(f"ds_read_b64_tr_b16 {vr(dst,2)}, v{vVADDR + db % 4} offset:{off}", "ds",
                 rd=V(vVADDR + db % 4), wr=V(dst, 2))
    def mfma_qk(self, sbuf, s, qb):
        d = vS + 32 * sbuf + 16 * qb
        a = vKF + 4 * (s % 4)
        b = vQ + (qb * 16 + s) * 4
        if s == 0:
            return I(f"v_mfma_f32_32x32x16_bf16 {vr(d,16)}, {vr(a,4)}, {vr(b,4)}, 0", "mfma",
                     rd=V(a, 4) + V(b, 4), wr=V(d, 16), cost=8)
        return I(f"v_mfma_f32_32x32x16_bf16 {vr(d,16)}, {vr(a,4)}, {vr(b,4)}, {vr(d,16)}", "mfma",
                 rd=V(a, 4) + V(b, 4), wr=V(d, 16), cost=8, c_rd=V(d, 16))
    def mfma_pv(self, sbuf, f, qb):
        kk, db = f // 8, f % 8
        d = qb * 128 + db * 16
        a = vVF + 4 * (f % 4)
        b = vS + 32 * sbuf + 16 * qb + 4 * kk
        return I(f"v_mfma_f32_32x32x16_bf16 {ar(d,16)}, {vr(a,4)}, {vr(b,4)}, {ar(d,16)}", "mfma",
                 rd=V(a, 4) + V(b, 4), wr=A(d, 16), cost=8, c_rd=A(d, 16))
    def softmax_stream(self, sbuf, kk):
        units = []
        for qb in range(2):
            for t in range(4 * kk, 4 * kk + 4):
                base = vS + 32 * sbuf + 16 * qb
                a, b, d = base + 2 * t, base + 2 * t + 1, base + t
                nm = vNEGM + qb
                l0, l1 = vL + 2 * qb, vL + 2 * qb + 1
                units.append([
                    I(f"v_fma_f32 v{a}, v{a}, s{sC}, v{nm}", "valu", rd=V(a) + V(nm), wr=V(a)),
                    I(f"v_fma_f32 v{b}, v{b}, s{sC}, v{nm}", "valu", rd=V(b) + V(nm), wr=V(b)),
                    I(f"v_exp_f32 v{a}, v{a}", "trans", rd=V(a), wr=V(a), cost=8),
                    I(f"v_exp_f32 v{b}, v{b}", "trans", rd=V(b), wr=V(b), cost=8),
                    I(f"v_add_f32 v{l0}, v{l0}, v{a}", "valu", rd=V(a) + V(l0), wr=V(l0)),
                    I(f"v_add_f32 v{l1}, v{l1}, v{b}", "valu", rd=V(b) + V(l1), wr=V(l1)),
                    I(f"v_cvt_pk_bf16_f32 v{d}, v{a}, v{b}", "valu", rd=V(a) + V(b), wr=V(d)),
                ])
        s = []
        s += units[0][0:2]
        for u in range(len(units)):
            s += units[u][2:4]
            if u + 1 < len(units): s += units[u + 1][0:2]
            else: s.append(I("s_nop 0", "nop"))
            s += units[u][4:7]
        return s
    def max_stream(self, sbuf):
        s = []
        for qb in range(2):
            base = vS + 32 * sbuf + 16 * qb
            m0, m1 = vMX + 2 * qb, vMX + 2 * qb + 1
            s.append(I(f"v_max3_f32 v{m0}, v{base}, v{base+1}, v{base+2}", "valu", rd=V(base, 3), wr=V(m0)))
            s.append(I(f"v_max3_f32 v{m1}, v{base+3}, v{base+4}, v{base+5}", "valu", rd=V(base + 3, 3), wr=V(m1)))
            k = 6
            tog = 0
            while k + 1 < 16:
                m = (m0, m1)[tog]
                s.append(I(f"v_max3_f32 v{m}, v{m}, v{base+k}, v{base+k+1}", "valu", rd=V(m) + V(base + k, 2), wr=V(m)))
                k += 2; tog ^= 1
            assert k == 16
            s.append(I(f"v_max_f32 v{m0}, v{m0}, v{m1}", "valu", rd=V(m0) + V(m1), wr=V(m0)))
        return s
    def dma_group(self, which, stage):
        base = (KBASE if which == "K" else VBASE) + stage * STAGE
        srd = sK if which == "K" else sV
        so = sKOFF if which == "K" else sVOFF
        r = []
        for i in range(4):
            vo = vDK + i if which == "K" else vDV + (i & 1)
            lst = []
            if i == 0:
                lst.append(I(f"s_add_u32 m0, s{sW}, {base}", "salu"))
                lst.append(I("s_nop 0", "nop"))
            lst.append(I(f"buffer_load_dwordx4 v{vo}, s[{srd}:{srd+3}], s{so} offen offset:{1024*i}{pol(KVPOL)} lds", "vmem", rd=V(vo), cost=16))
            r.append(lst)
        return r

g = Gen()
STAMPS = "--stamps" in sys.argv
ARGS = [a for a in sys.argv[1:] if not a.startswith("--")]
nstamp = 0
def stamp():
    global nstamp
    if not STAMPS: return
    g.raw(f"s_memtime s[{64+2*nstamp}:{65+2*nstamp}]")
    g.raw("s_waitcnt lgkmcnt(0)", "wait")
    nstamp += 1
def stamp_rt(i):
    if not STAMPS: return
    g.raw(f"s_memrealtime s[{64+2*i}:{65+2*i}]")
    g.raw("s_waitcnt lgkmcnt(0)", "wait")
def stamp_store():
    if not STAMPS: return
    g.raw("s_waitcnt vmcnt(0)", "wait")
    stamp()
    stamp_rt(14)
    g.raw(f"s_mov_b32 s{64+30}, {nstamp}")
    g.raw(f"s_mov_b32 s{64+31}, 0")
    g.raw("s_load_dwordx2 s[44:45], s[98:99], 40")
    g.raw(f"s_lshl_b32 s46, s100, 2")
    g.raw(f"s_add_u32 s46, s46, s{sWID}")
    g.raw(f"s_lshl_b32 s46, s46, 7")
    g.raw("s_waitcnt lgkmcnt(0)", "wait")
    g.raw("s_add_u32 s44, s44, s46")
    g.raw("s_addc_u32 s45, s45, 0")
    g.raw("v_mov_b32 v0, 0", "valu")
    for i in range(16):
        g.raw(f"v_mov_b32 v2, s{64+2*i}", "valu")
        g.raw(f"v_mov_b32 v3, s{65+2*i}", "valu")
        g.raw(f"global_store_dwordx2 v0, v[2:3], s[44:45] offset:{8*i}", "vmem")
        g.raw("s_nop 1", "nop")

def prologue():
    e, raw = g.e, g.raw
    raw("s_cmp_ge_u32 s2, 256")
    raw("s_cbranch_scc1 L_end", "branch")
    if STAMPS:
        raw("s_mov_b64 s[98:99], s[0:1]")
        raw("s_mov_b32 s100, s2")
        for i in range(16): raw(f"s_mov_b64 s[{64+2*i}:{65+2*i}], 0")
        stamp(); stamp_rt(13)
    raw("s_load_dwordx4 s[4:7], s[0:1], 0")
    raw("s_load_dwordx4 s[8:11], s[0:1], 16")
    raw("v_lshrrev_b32 v32, 6, v0", "valu")
    raw("v_and_b32 v33, 63, v0", "valu")
    raw(f"v_readfirstlane_b32 s{sWID}, v32", "valu")
    raw("v_and_b32 v34, 31, v33", "valu")
    raw("v_lshrrev_b32 v35, 5, v33", "valu")
    raw("v_and_b32 v36, 15, v33", "valu")
    raw(f"s_lshl_b32 s{sW}, s{sWID}, 12")
    raw("s_and_b32 s3, s2, 7")
    raw("s_lshr_b32 s42, s2, 3")
    raw("s_lshl_b32 s3, s3, 4")
    raw("s_lshr_b32 s43, s42, 1")
    raw("s_add_u32 s3, s3, s43")
    raw("s_and_b32 s42, s42, 1")
    raw("s_lshl_b32 s43, s3, 19")
    raw("s_lshl_b32 s44, s3, 18")
    raw("s_lshl_b32 s42, s42, 17")
    raw("s_add_u32 s44, s44, s42")
    raw(f"s_mov_b32 s{sC}, {f32hex(C_SCALE)}")
    raw(f"s_mov_b32 s{sINVC}, {f32hex(1.0 / C_SCALE)}")
    raw(f"s_mov_b32 s{sTHC}, {f32hex(THRESH / C_SCALE)}")
    raw(f"s_mov_b32 s{s16K}, 16384")
    raw("v_xor_b32 v37, v35, v36", "valu")
    raw("v_lshlrev_b32 v37, 4, v37", "valu")
    raw(f"v_lshl_add_u32 v{vKADDR}, v34, 9, v37", "valu")
    for s8 in range(1, 8):
        raw(f"v_xor_b32 v{vKADDR+s8}, {s8 << 5}, v{vKADDR}", "valu")
    raw("v_lshrrev_b32 v37, 2, v36", "valu")
    raw("v_and_b32 v38, 3, v33", "valu")
    raw("v_bfe_u32 v39, v33, 4, 1", "valu")
    raw("v_lshl_add_u32 v40, v35, 2, v37", "valu")
    raw("v_lshlrev_b32 v40, 9, v40", "valu")
    raw("v_lshl_add_u32 v40, v37, 6, v40", "valu")
    raw("v_lshl_add_u32 v40, v39, 5, v40", "valu")
    raw("v_lshl_add_u32 v40, v38, 3, v40", "valu")
    raw(f"v_add_u32 v{vVADDR}, {VBASE}, v40", "valu")
    for d in range(1, 4):
        raw(f"v_xor_b32 v{vVADDR+d}, {d << 6}, v{vVADDR}", "valu")
    raw("v_and_b32 v37, 1, v32", "valu")
    raw("v_lshl_add_u32 v37, v37, 3, v35", "valu")
    raw("v_xor_b32 v37, v37, v34", "valu")
    raw("v_lshlrev_b32 v37, 4, v37", "valu")
    raw("v_lshl_add_u32 v37, v35, 9, v37", "valu")
    raw(f"v_lshl_add_u32 v{vDK}, v32, 12, v37", "valu")
    for i in range(1, 4):
        raw(f"v_xor_b32 v{vDK+i}, {i << 5}, v{vDK}", "valu")
    raw("v_lshlrev_b32 v37, 2, v35", "valu")
    raw("v_xor_b32 v37, v37, v34", "valu")
    raw("v_lshlrev_b32 v37, 4, v37", "valu")
    raw("v_lshl_add_u32 v37, v35, 9, v37", "valu")
    raw(f"v_lshl_add_u32 v{vDV}, v32, 12, v37", "valu")
    raw(f"v_xor_b32 v{vDV+1}, 128, v{vDV}", "valu")
    raw("v_lshl_add_u32 v41, v32, 6, v34", "valu")
    raw("v_lshlrev_b32 v41, 9, v41", "valu")
    raw("v_lshl_add_u32 v41, v35, 4, v41", "valu")
    raw("s_waitcnt lgkmcnt(0)", "wait")
    def srd(dst, plo, off, nbytes):
        raw(f"s_add_u32 s{dst}, s{plo}, s{off}")
        raw(f"s_addc_u32 s{dst+1}, s{plo+1}, 0")
        raw(f"s_and_b32 s{dst+1}, s{dst+1}, 0xffff")
        raw(f"s_mov_b32 s{dst+2}, {nbytes}")
        raw(f"s_mov_b32 s{dst+3}, 0x00020000")
    srd(sK, 6, 43, 524288)
    srd(sQ, 4, 44, 131072)
    srd(sV, 8, 43, 524288)
    srd(sO, 10, 44, 131072)
    def dma_now(which, tile):
        so = sKOFF if which == "K" else sVOFF
        raw(f"s_mov_b32 s{so}, {tile * 16384}")
        for lst in g.dma_group(which, tile % 4):
            for ins in lst:
                if ins.kind == "vmem": g.vm(ins, (which, tile))
                else: g.e(ins)
    dma_now("K", 0)
    for qb in range(2):
        for s in range(16):
            d = vQ + (qb * 16 + s) * 4
            so = "0" if qb == 0 else f"s{s16K}"
            g.vm(I(f"buffer_load_dwordx4 {vr(d,4)}, v41, s[{sQ}:{sQ+3}], {so} offen offset:{s*32}{pol(QPOL)}", "vmem",
                   rd=V(41), wr=V(d, 4)), "Q")
    dma_now("K", 1)
    dma_now("V", 0)
    dma_now("K", 2)
    dma_now("V", 1)
    dma_now("K", 3)
    raw(f"s_mov_b32 s{sKOFF}, {4 * 16384}")
    raw(f"s_mov_b32 s{sVOFF}, {2 * 16384}")
    for i in range(256):
        e(I(f"v_accvgpr_write_b32 a{i}, 0", "valu", wr=A(i)))
    for i in range(4):
        e(I(f"v_mov_b32 v{vL+i}, 0", "valu", wr=V(vL + i)))
    stamp()
    if STAMPS:
        g.wait_vm({("K", 0)})
        stamp()
    g.wait_vm({("K", 0), "Q"})
    stamp()
    raw("s_barrier", "barrier")
    stamp()
    for s in range(4): g.ds(g.kread(0, s), ("K", 0, s))
    for s in range(16):
        g.wait_lds(("K", 0, s))
        e(g.mfma_qk(0, s, 0))
        e(g.mfma_qk(0, s, 1))
        if s + 4 < 16: g.ds(g.kread(0, s + 4), ("K", 0, s + 4))
    g.wait_vm({("K", 1), ("V", 0)})
    raw("s_barrier", "barrier")
    for s in range(4): g.ds(g.kread(1, s), ("K", 1, s))
    for which, tile in (("V", 2), ("K", 4)):
        for lst in g.dma_group(which, tile % 4):
            for ins in lst:
                if ins.kind == "vmem": g.vm(ins, (which, tile))
                else: g.e(ins)
    raw(f"s_add_u32 s{sKOFF}, s{sKOFF}, 16384")
    raw(f"s_add_u32 s{sVOFF}, s{sVOFF}, 16384")
    g.nop(3)
    for ins in g.max_stream(0): e(ins)
    for qb in range(2):
        mx = vMX + 2 * qb
        e(I(f"v_mov_b32 v{mx+1}, v{mx}", "valu", rd=V(mx), wr=V(mx + 1)))
    g.nop(1)
    for qb in range(2):
        mx = vMX + 2 * qb
        e(I(f"v_permlane32_swap_b32 v{mx}, v{mx+1}", "perm", rd=V(mx, 2), wr=V(mx, 2)))
    g.nop(1)
    for qb in range(2):
        mx = vMX + 2 * qb
        e(I(f"v_max_f32 v{mx}, v{mx}, v{mx+1}", "valu", rd=V(mx, 2), wr=V(mx)))
        e(I(f"v_mul_f32 v{mx}, s{sC}, v{mx}", "valu", rd=V(mx), wr=V(mx)))
        e(I(f"v_sub_f32 v{vNEGM+qb}, 0, v{mx}", "valu", rd=V(mx), wr=V(vNEGM + qb)))
        e(I(f"v_mov_b32 v{mx+1}, s{sTHC}", "valu", wr=V(mx + 1)))
        e(I(f"v_fma_f32 v{vTHR+qb}, v{mx}, s{sINVC}, v{mx+1}", "valu", rd=V(mx, 2), wr=V(vTHR + qb)))

def spread(stream, g0, g1, slots):
    tot = sum(i.cost for i in stream)
    n = g1 - g0 + 1
    acc = 0
    for ins in stream:
        gi = g0 + min(n - 1, int((acc + ins.cost / 2) * n / tot))
        slots[gi].append(ins)
        acc += ins.cost

def iteration(j, last=False, dma=True, ret_id=0):
    cur, nxt = j % 2, (j + 1) % 2
    slots = [[] for _ in range(64)]
    pre = [[] for _ in range(64)]
    sm0 = g.softmax_stream(cur, 0)
    sm1 = g.softmax_stream(cur, 1)
    if not last:
        spread(sm0 + sm1, 0, 45, slots)
        mx = g.max_stream(nxt)
        chk = [
            I(f"v_cmp_gt_f32 vcc, v{vMX}, v{vTHR}", "valu", rd=V(vMX) + V(vTHR)),
            I(f"v_cmp_gt_f32 s[{sTMP}:{sTMP+1}], v{vMX+2}, v{vTHR+1}", "valu", rd=V(vMX + 2) + V(vTHR + 1)),
        ]
        spread(mx + chk, 48, 61, slots)
    mf = []
    if not last:
        for s in range(16):
            mf.append(("qk", s, 0)); mf.append(("qk", s, 1))
    for f in range(16):
        mf.append(("pv", f, 0)); mf.append(("pv", f, 1))
    if last:
        for f in range(4):
            for jj in range(2): g.ds(g.vread(j, f, jj), ("V", j, f))
        for ins in sm0: g.e(ins)
        g.nop(1)
        sl = [[] for _ in range(32)]
        spread(sm1, 0, 13, sl)
        for gi, (_, f, qb) in enumerate(mf):
            if qb == 0: g.wait_lds(("V", j, f))
            g.e(g.mfma_pv(cur, f, qb))
            for ins in sl[gi]: g.e(ins)
            if qb == 1 and f + 4 < 16:
                for jj in range(2): g.ds(g.vread(j, f + 4, jj), ("V", j, f + 4))
        return
    dmas = []
    if dma:
        for which, tile in (("V", j + 3), ("K", j + 5)):
            for lst in g.dma_group(which, tile % 4):
                dmas.append((lst, (which, tile)))
    dma_gap = {48 + 2 * i: d for i, d in enumerate(dmas)}
    for gi, (kind, x, qb) in enumerate(mf):
        if kind == "qk":
            if qb == 0: g.wait_lds(("K", j + 1, x))
            g.e(g.mfma_qk(nxt, x, qb))
        else:
            if qb == 0: g.wait_lds(("V", j, x))
            g.e(g.mfma_pv(cur, x, qb))
        if qb == 1:
            if kind == "qk":
                if x + 4 < 16: g.ds(g.kread(j + 1, x + 4), ("K", j + 1, x + 4))
                else:
                    f = x + 4 - 16
                    for jj in range(2): g.ds(g.vread(j, f, jj), ("V", j, f))
            else:
                if x + 4 < 16:
                    for jj in range(2): g.ds(g.vread(j, x + 4, jj), ("V", j, x + 4))
                else:
                    s = x + 4 - 16
                    g.ds(g.kread(j + 2, s), ("K", j + 2, s))
        for ins in slots[gi]: g.e(ins)
        if gi == 30:
            g.wait_vm({("K", j + 2), ("V", j + 1)})
            g.raw("s_barrier", "barrier")
        if gi in dma_gap:
            lst, tag = dma_gap[gi]
            for ins in lst:
                if ins.kind == "vmem": g.vm(ins, tag)
                else: g.e(ins)
    if dma:
        g.raw(f"s_add_u32 s{sKOFF}, s{sKOFF}, 16384")
        g.raw(f"s_add_u32 s{sVOFF}, s{sVOFF}, 16384")
    g.raw(f"s_or_b64 s[{sTMP}:{sTMP+1}], s[{sTMP}:{sTMP+1}], vcc")
    g.raw(f"s_cbranch_scc0 L_skip_{ret_id}", "branch")
    g.raw(f"s_getpc_b64 s[{sRET}:{sRET+1}]")
    g.raw(f"s_add_u32 s{sRET}, s{sRET}, L_skip_{ret_id} - . - 0 + 0")
    g.raw(f"s_addc_u32 s{sRET+1}, s{sRET+1}, 0")
    g.raw("s_branch L_rescale", "branch")
    g.label(f"L_skip_{ret_id}")

def rescale_sub():
    e = g.e
    g.label("L_rescale")
    g.nop(15)
    for qb in range(2):
        mx = vMX + 2 * qb
        e(I(f"v_mov_b32 v{mx+1}, v{mx}", "valu", rd=V(mx), wr=V(mx + 1)))
    g.nop(1)
    for qb in range(2):
        mx = vMX + 2 * qb
        e(I(f"v_permlane32_swap_b32 v{mx}, v{mx+1}", "perm", rd=V(mx, 2), wr=V(mx, 2)))
    g.nop(1)
    for qb in range(2):
        mx = vMX + 2 * qb
        nm = vNEGM + qb
        e(I(f"v_max_f32 v{mx}, v{mx}, v{mx+1}", "valu", rd=V(mx, 2), wr=V(mx)))
        e(I(f"v_mul_f32 v{mx}, s{sC}, v{mx}", "valu", rd=V(mx), wr=V(mx)))
        e(I(f"v_max_f32 v{mx}, v{mx}, -v{nm}", "valu", rd=V(mx) + V(nm), wr=V(mx)))
        e(I(f"v_sub_f32 v{vT+qb}, -v{nm}, v{mx}", "valu", rd=V(mx) + V(nm), wr=V(vT + qb)))
        e(I(f"v_exp_f32 v{vT+qb}, v{vT+qb}", "trans", rd=V(vT + qb), wr=V(vT + qb)))
        e(I(f"v_sub_f32 v{nm}, 0, v{mx}", "valu", rd=V(mx), wr=V(nm)))
        e(I(f"v_mov_b32 v{mx+1}, s{sTHC}", "valu", wr=V(mx + 1)))
        e(I(f"v_fma_f32 v{vTHR+qb}, v{mx}, s{sINVC}, v{mx+1}", "valu", rd=V(mx, 2), wr=V(vTHR + qb)))
        for k in range(2):
            l = vL + 2 * qb + k
            e(I(f"v_mul_f32 v{l}, v{l}, v{vT+qb}", "valu", rd=V(l) + V(vT + qb), wr=V(l)))
    for qb in range(2):
        for r in range(0, 128, 4):
            for k in range(4):
                e(I(f"v_accvgpr_read_b32 v{vMX+k}, a{qb*128+r+k}", "valu", rd=A(qb * 128 + r + k), wr=V(vMX + k)))
            for k in range(4):
                e(I(f"v_mul_f32 v{vMX+k}, v{vMX+k}, v{vT+qb}", "valu", rd=V(vMX + k) + V(vT + qb), wr=V(vMX + k)))
            for k in range(4):
                e(I(f"v_accvgpr_write_b32 a{qb*128+r+k}, v{vMX+k}", "valu", rd=V(vMX + k), wr=A(qb * 128 + r + k)))
    g.nop(1)
    g.raw(f"s_setpc_b64 s[{sRET}:{sRET+1}]", "branch")

def epilogue():
    e, raw = g.e, g.raw
    for qb in range(2):
        l = vL + 2 * qb
        e(I(f"v_add_f32 v{l}, v{l}, v{l+1}", "valu", rd=V(l, 2), wr=V(l)))
        e(I(f"v_mov_b32 v{l+1}, v{l}", "valu", rd=V(l), wr=V(l + 1)))
    g.nop(1)
    for qb in range(2):
        l = vL + 2 * qb
        e(I(f"v_permlane32_swap_b32 v{l}, v{l+1}", "perm", rd=V(l, 2), wr=V(l, 2)))
    g.nop(1)
    for qb in range(2):
        l = vL + 2 * qb
        e(I(f"v_add_f32 v{l}, v{l}, v{l+1}", "valu", rd=V(l, 2), wr=V(l)))
        e(I(f"v_rcp_f32 v{l}, v{l}", "trans", rd=V(l), wr=V(l)))
    raw(f"v_mbcnt_lo_u32_b32 v{vT}, -1, 0", "valu")
    raw(f"v_mbcnt_hi_u32_b32 v{vT}, -1, v{vT}", "valu")
    raw(f"v_and_b32 v{vT+1}, 31, v{vT}", "valu")
    raw(f"v_lshrrev_b32 v{vT}, 5, v{vT}", "valu")
    raw(f"v_lshlrev_b32 v{vT}, 4, v{vT}", "valu")
    raw(f"v_lshl_add_u32 v{vT}, v{vT+1}, 9, v{vT}", "valu")
    raw(f"s_lshl_b32 s42, s{sWID}, 15")
    raw(f"s_add_u32 s43, s42, 16384")
    g.nop(7)
    u = 0
    for qb in range(2):
        l = vL + 2 * qb
        for db in range(8):
            for pr in range(2):
                t = vS + 8 * (u % 8); u += 1
                a0 = qb * 128 + db * 16 + pr * 8
                for k in range(8):
                    e(I(f"v_accvgpr_read_b32 v{t+k}, a{a0+k}", "valu", rd=A(a0 + k), wr=V(t + k)))
                for k in range(8):
                    e(I(f"v_mul_f32 v{t+k}, v{t+k}, v{l}", "valu", rd=V(t + k) + V(l), wr=V(t + k)))
                for k in range(4):
                    e(I(f"v_cvt_pk_bf16_f32 v{t+k}, v{t+2*k}, v{t+2*k+1}", "valu", rd=V(t + 2 * k, 2), wr=V(t + k)))
                g.nop(1)
                e(I(f"v_permlane32_swap_b32 v{t}, v{t+2}", "perm", rd=V(t) + V(t + 2), wr=V(t) + V(t + 2)))
                e(I(f"v_permlane32_swap_b32 v{t+1}, v{t+3}", "perm", rd=V(t + 1) + V(t + 3), wr=V(t + 1) + V(t + 3)))
                so = 42 + qb
                e(I(f"buffer_store_dwordx4 {vr(t,4)}, v{vT}, s[{sO}:{sO+3}], s{so} offen offset:{64*db+32*pr}{pol(OPOL)}", "vmem",
                    rd=V(t, 4) + V(vT)))

def check_hazards(seq):
    bad = 0
    n = len(seq)
    for i, c in enumerate(seq):
        if c.kind in ("label",): continue
        ws = 0
        for k in range(i - 1, max(-1, i - 24), -1):
            p = seq[k]
            if p.kind == "label": continue
            need = 0
            if p.kind in ("valu", "trans", "perm") and c.kind == "mfma" and (p.wr & (c.rd | c.c_rd)): need = 2
            if p.kind == "mfma":
                if c.kind in ("valu", "trans", "perm", "ds", "vmem") and (p.wr & (c.rd | c.wr)): need = max(need, 12)
                if c.kind == "mfma" and (p.wr & c.rd): need = max(need, 12)
                if c.kind == "mfma" and (p.wr & c.c_rd) and p.wr != c.c_rd: need = max(need, 10)
                if c.kind in ("valu", "trans", "perm") and (p.c_rd & c.wr): need = max(need, 7)
            if p.kind == "trans" and c.kind in ("valu", "perm", "mfma") and (p.wr & c.rd): need = max(need, 1)
            if p.kind in ("valu", "trans") and c.kind == "perm" and (p.wr & c.rd): need = max(need, 2)
            if p.kind == "vmem" and "store" in p.text and c.kind in ("valu", "trans", "perm") and (p.rd & c.wr): need = max(need, 2)
            if ws < need:
                print(f"HAZARD: need {need} have {ws}:\n   {p.text}\n   {c.text}", file=sys.stderr)
                bad += 1
            ws += (int(p.text.split()[1]) + 1) if p.kind == "nop" else 1
    return bad

prologue()
stamp()
g.raw(f"s_mov_b32 s{sCNT}, 7")
g.label("L_loop")
loop_start = len(g.out)
lds_state0, vm_state0 = list(g.lds_q), list(g.vm_q)
for u in range(4):
    iteration(u, ret_id=u)
g.raw(f"s_sub_u32 s{sCNT}, s{sCNT}, 1")
g.raw(f"s_cmp_lg_u32 s{sCNT}, 0")
g.raw("s_cbranch_scc1 L_loop", "branch")
loop_end = len(g.out)
def shift(q, d):
    r = []
    for t in q:
        if isinstance(t, tuple): r.append((t[0], t[1] + d) + tuple(t[2:]))
        else: r.append(t)
    return r
assert shift(lds_state0, 4) == g.lds_q, (lds_state0, g.lds_q)
assert shift(vm_state0, 4) == g.vm_q, (vm_state0, g.vm_q)
g.lds_q = shift(g.lds_q, 24); g.vm_q = shift(g.vm_q, 24)
stamp()
for j in range(28, 32):
    iteration(j, last=(j == 31), dma=(j == 28), ret_id=j)
g.nop(15)
stamp()
epilogue()
stamp()
stamp_store()
g.label("L_end")
g.raw("s_endpgm", "branch")
rescale_sub()

seq = g.out
nb = check_hazards(seq[:loop_end] + seq[loop_start:loop_end] + seq[loop_end:])
if nb: print(f"{nb} hazards", file=sys.stderr)

hdr = open("cdna_kernels/" + NAME + ".s.ref").read().split("; Override launch geometry")[0]
lines = [hdr.rstrip("\n"),
         "; Generated by gen.py",
         "; @launch grid=(256,1,1) block=(256,1,1) lds=131072",
         '.amdgcn_target "amdgcn-amd-amdhsa--gfx950"',
         ".text",
         f".globl {NAME}_kernel",
         ".p2align 8",
         f".type {NAME}_kernel,@function",
         f"{NAME}_kernel:"]
for ins in seq:
    t = ins.text
    if t.startswith(f"s_add_u32 s{sRET}, s{sRET}, L_skip_"):
        lab = t.split(",")[2].split()[0]
        lines.append(f"Lpc_{lab}:")
        t = f"s_add_u32 s{sRET}, s{sRET}, {lab} - Lpc_{lab}"
    lines.append(("" if ins.kind == "label" else "    ") + t)
lines += [
    '.section .rodata,"a"',
    ".p2align 6",
    f".amdhsa_kernel {NAME}_kernel",
    "  .amdhsa_next_free_vgpr 512",
    f"  .amdhsa_next_free_sgpr {102 if STAMPS else 64}",
    "  .amdhsa_accum_offset 256",
    "  .amdhsa_group_segment_fixed_size 0",
    "  .amdhsa_kernarg_size 48",
    "  .amdhsa_user_sgpr_count 2",
    "  .amdhsa_user_sgpr_kernarg_segment_ptr 1",
    "  .amdhsa_system_sgpr_workgroup_id_x 1",
    ".end_amdhsa_kernel",
]
outp = ARGS[0] if ARGS else "cdna_kernels/" + NAME + ".s"
open(outp, "w").write("\n".join(lines) + "\n")
print("wrote", outp, len(seq), "instrs")
```
